```python
import torch

def _softmax(x, axis=-1):
    return torch.softmax(x, dim=axis)
def _gelu(x):
    return torch.nn.functional.gelu(x, approximate="tanh")
def _silu(x):
    return torch.nn.functional.silu(x)
def _sigmoid(x):
    return torch.sigmoid(x)
def _layernorm(x, axis=-1, eps=1e-5):
    m = x.mean(dim=axis, keepdim=True)
    v = x.var(dim=axis, keepdim=True, unbiased=False)
    return (x - m) / torch.sqrt(v + eps)
def _scatter_add(tgt, idx, src, axis=0):
    return tgt.clone().index_add_(axis, idx, src)
def _segment_sum(src, seg, n):
    out = torch.zeros((n,) + src.shape[1:], dtype=src.dtype)
    return out.index_add_(0, seg, src)
def _pad(x, pw):
    flat = tuple(v for pair in reversed(pw) for v in pair)
    return torch.nn.functional.pad(x, flat)

kernel_name = 'sequential_preLN__ssm_conv_s4d__mixer_token_mlp__prompt'

def setup_inputs():

    _w = (lambda a: (lambda t: t.to(torch.bfloat16) if t.is_floating_point() else t)(torch.as_tensor(a)))
    def _A_setup():
        Bsz, L, D, N = 1, 2048, 576, 128
        return {
            "u": _w((lambda *s: torch.randn(*s, dtype=torch.bfloat16) * 0.05)(Bsz, L, D)),
            "log_A_real": _w((lambda *s: torch.randn(*s, dtype=torch.bfloat16) * 6.4)(D, N) * 0.5),
            "A_imag": _w((lambda *s: torch.randn(*s, dtype=torch.bfloat16) * 0.05)(D, N) * 3.14),
            "C_real": _w((lambda *s: torch.randn(*s, dtype=torch.bfloat16) * 0.05)(D, N) / N ** 0.5),
            "C_imag": _w((lambda *s: torch.randn(*s, dtype=torch.bfloat16) * 0.05)(D, N) / N ** 0.5),
            "log_dt": _w((lambda *s: torch.randn(*s, dtype=torch.bfloat16) * 0.05)(D) * 0.5 - 4.0),
            "D_skip": _w((lambda *s: torch.randn(*s, dtype=torch.bfloat16) * 0.05)(D)),
        }
    _A_in = _A_setup()

    def _B_setup():
        B, S, D, F = 1, 2048, 576, 4608
        return {
            "x": _w((lambda *s: torch.randn(*s, dtype=torch.bfloat16) * 0.05)(B, S, D)),
            "w1": _w((lambda *s: torch.randn(*s, dtype=torch.bfloat16) * 0.4)(S, F) * (S ** -0.5)),
            "b1": _w((lambda *s: torch.randn(*s, dtype=torch.bfloat16) * 0.1)(F) * 0.02),
            "w2": _w((lambda *s: torch.randn(*s, dtype=torch.bfloat16) * 0.1)(F, S) * (F ** -0.5)),
            "b2": _w((lambda *s: torch.randn(*s, dtype=torch.bfloat16) * 0.1)(S) * 0.02),
        }
    _B_in = _B_setup()

    return {
        "A_u": _A_in["u"],
        "A_log_A_real": _A_in["log_A_real"],
        "A_A_imag": _A_in["A_imag"],
        "A_C_real": _A_in["C_real"],
        "A_C_imag": _A_in["C_imag"],
        "A_log_dt": _A_in["log_dt"],
        "A_D_skip": _A_in["D_skip"],
        "B_x": _B_in["x"],
        "B_w1": _B_in["w1"],
        "B_b1": _B_in["b1"],
        "B_w2": _B_in["w2"],
        "B_b2": _B_in["b2"],
    }

def reference(A_u, A_log_A_real, A_A_imag, A_C_real, A_C_imag, A_log_dt, A_D_skip, B_x, B_w1, B_b1, B_w2, B_b2):
    def _A_ref(u, log_A_real, A_imag, C_real, C_imag, log_dt, D_skip):
        L = u.shape[1]
        dt = torch.exp(log_dt)
        A = -torch.exp(log_A_real) + 1j * A_imag
        C = (C_real + 1j * C_imag) * dt[:, None]
        pos = (lambda x, dt: x.to(dt))(torch.arange(L), log_dt.dtype)
        P = torch.exp((A * dt[:, None])[:, :, None] * pos[None, None, :])
        K = 2.0 * torch.einsum("dn,dnl->dl", C, P).real
        L2 = 2 * L
        u_t = (lambda x, *d: x.permute(*d))(u, 0, 2, 1)
        Kf = (lambda x, *a, **k: torch.fft.rfft(x.float(), *a, **k))(K, L2)
        Uf = (lambda x, *a, **k: torch.fft.rfft(x.float(), *a, **k))(u_t, L2)
        y = (lambda x, *a, **k: torch.fft.irfft(x, *a, **k).to(torch.bfloat16))(Uf * Kf[None, :, :], L2)[:, :, :L]
        y = (lambda x, *d: x.permute(*d))(y, 0, 2, 1)
        return y + u * D_skip[None, None, :]

    def _B_ref(x, w1, b1, w2, b2):
        B, S, D = x.shape
        h = _layernorm(x, axis=-1)
        u = torch.einsum("bsd,sf->bdf", h, w1) + b1
        u = _gelu(u)
        y = torch.einsum("bdf,fs->bds", u, w2) + b2
        return (lambda x, *d: x.permute(*d))(y, 0, 2, 1)

    x = A_u
    h = x + _A_ref(_layernorm(x, axis=-1), A_log_A_real, A_A_imag, A_C_real, A_C_imag, A_log_dt, A_D_skip)
    h2 = h + _B_ref(_layernorm(h, axis=-1), B_w1, B_b1, B_w2, B_b2)
    return h2
```

```python
class Asm:
    def __init__(self):
        self.lines = []
        self._lab = 0

    def __call__(self, s):
        for ln in s.strip("\n").split("\n"):
            self.lines.append("    " + ln.strip())

    def raw(self, s):
        self.lines.append(s)

    def label(self, name):
        self.lines.append(name + ":")

    def newlabel(self, base="L"):
        self._lab += 1
        return f"{base}_{self._lab}"

    def comment(self, s):
        self.lines.append("    ; " + s)

    def text(self):
        return "\n".join(self.lines) + "\n"


def vr(base, n=1):
    return f"v{base}" if n == 1 else f"v[{base}:{base+n-1}]"


def ar(base, n=1):
    return f"a{base}" if n == 1 else f"a[{base}:{base+n-1}]"


def sr(base, n=1):
    return f"s{base}" if n == 1 else f"s[{base}:{base+n-1}]"


def kernel_header(a, name):
    a.raw(f".globl {name}")
    a.raw(".p2align 8")
    a.raw(f".type {name},@function")
    a.raw(f"{name}:")


def kernel_desc(name, vgpr, sgpr=102, accum=None, wg_y=False):
    if accum is None:
        accum = (vgpr + 3) // 4 * 4
    s = f""".p2align 6
.amdhsa_kernel {name}
  .amdhsa_next_free_vgpr {vgpr}
  .amdhsa_next_free_sgpr {sgpr}
  .amdhsa_accum_offset {accum}
  .amdhsa_group_segment_fixed_size 0
  .amdhsa_kernarg_size 120
  .amdhsa_user_sgpr_count 2
  .amdhsa_user_sgpr_kernarg_segment_ptr 1
  .amdhsa_system_sgpr_workgroup_id_x 1
"""
    if wg_y:
        s += "  .amdhsa_system_sgpr_workgroup_id_y 1\n"
    s += ".end_amdhsa_kernel\n"
    return s


def srd(a, d, ptr, nbytes):
    a(f"s_mov_b32 s{d}, s{ptr}")
    a(f"s_and_b32 s{d+1}, s{ptr+1}, 0xffff")
    a(f"s_mov_b32 s{d+2}, {nbytes}")
    a(f"s_mov_b32 s{d+3}, 0x00020000")
```

```python
from gen import *
from asmlib import *


def gen_k2(a):
    name = "conv_kernel"
    kernel_header(a, name)
    KC = 0
    KCC = 33280
    U = 99840
    UC = 4608
    X = 113664
    XC = 4096
    LDS = 125952
    a("s_cmp_ge_u32 s2, 192\ns_cbranch_scc1 L_k2_end")
    load_ptr(a, "u", 4)
    load_ptr(a, "ws", 6)
    load_ptr(a, "Dsk", 8)
    a("v_lshrrev_b32 v1, 6, v0\nv_and_b32 v2, 63, v0\ns_nop 0\nv_readfirstlane_b32 s3, v1")
    a("s_waitcnt lgkmcnt(0)")
    srd(a, 20, 4, SZ["u"])
    srd(a, 24, 6, WS_SIZE)
    srd(a, 28, 8, SZ["Dsk"])
    a("""
    s_mul_i32 s4, s2, 6
    s_and_b32 s5, s4, 2
    s_lshl_b32 s5, s5, 3
    s_and_b32 s4, s4, 0xfffffffc
    v_mul_u32_u24 v3, 1152, v0
    v_lshlrev_b32 v4, 3, v0
    """)
    XR = 8
    ST = 24
    for k in range(8):
        a(f"s_add_u32 s6, s4, {k*256*1152}")
        a(f"buffer_load_dwordx2 v[{XR+2*k}:{XR+2*k+1}], v3, s[20:23], s6 offen")
    for k in range(8):
        a(f"buffer_load_dwordx2 v[{ST+2*k}:{ST+2*k+1}], v4, s[24:27], 0 offen offset:{WS_STATS1 + 0}" if k == 0 else
          f"s_mov_b32 s6, {WS_STATS1 + k*2048}\nbuffer_load_dwordx2 v[{ST+2*k}:{ST+2*k+1}], v4, s[24:27], s6 offen")
    KR = 40
    a(f"""
    v_lshlrev_b32 v5, 4, v0
    s_mul_i32 s7, s2, {3*KR_PITCH}
    s_add_u32 s7, s7, {WS_KR}
    """)
    for c in range(3):
        a(f"buffer_load_dwordx4 v[{KR+8*c}:{KR+8*c+3}], v5, s[24:27], s7 offen offset:0")
        a(f"buffer_load_dwordx4 v[{KR+8*c+4}:{KR+8*c+7}], v5, s[24:27], s7 offen offset:16")
        a(f"s_add_u32 s8, s7, 4096")
        a(f"buffer_load_dwordx4 v[{KR+24+8*c}:{KR+24+8*c+3}], v5, s[24:27], s8 offen offset:0")
        a(f"buffer_load_dwordx4 v[{KR+24+8*c+4}:{KR+24+8*c+7}], v5, s[24:27], s8 offen offset:16")
        a(f"s_add_u32 s7, s7, {KR_PITCH}")
    a(f"""
    s_mul_i32 s9, s2, 6
    v_mov_b32 v6, s9
    buffer_load_ushort v200, v6, s[28:31], 0 offen
    buffer_load_ushort v201, v6, s[28:31], 0 offen offset:2
    buffer_load_ushort v202, v6, s[28:31], 0 offen offset:4
    s_mul_i32 s9, s2, 12
    s_add_u32 s9, s9, {WS_KSC}
    v_mov_b32 v6, 0
    buffer_load_dwordx3 v[204:206], v6, s[24:27], s9 offen
    """)
    a(f"""
    v_mov_b32 v96, 0
    v_mov_b32 v97, 0
    v_mov_b32 v98, 0
    v_mov_b32 v99, 0
    v_cmp_gt_u32 vcc, 32, v0
    s_and_saveexec_b64 s[48:49], vcc
    v_add_u32 v7, {U}, v5
    ds_write_b128 v7, v[96:99]
    ds_write_b128 v7, v[96:99] offset:{UC}
    ds_write_b128 v7, v[96:99] offset:{2*UC}
    s_mov_b64 exec, s[48:49]
    """)
    a("s_waitcnt vmcnt(16)")
    a(f"v_lshlrev_b32 v7, 1, v0")
    a(f"v_add_u32 v95, {U + 512}, v7")
    a(f"v_add_u32 v7, {X}, v7")
    for k in range(8):
        d0, d1 = XR + 2*k, XR + 2*k + 1
        m, r = ST + 2*k, ST + 2*k + 1
        a(f"v_alignbit_b32 v100, v{d1}, v{d0}, s5")
        a(f"v_lshrrev_b32 v101, s5, v{d1}")
        a(f"ds_write_b16 v7, v100 offset:{k*512}")
        a(f"ds_write_b16_d16_hi v7, v100 offset:{XC + k*512}")
        a(f"ds_write_b16 v7, v101 offset:{2*XC + k*512}")
        a(f"v_lshlrev_b32 v102, 16, v100")
        a(f"v_and_b32 v103, 0xffff0000, v100")
        a(f"v_lshlrev_b32 v104, 16, v101")
        for c in range(3):
            v = 102 + c
            a(f"v_sub_f32 v{v}, v{v}, v{m}")
            bf16r(a, v, v)
            a(f"v_mul_f32 v{v}, v{v}, v{r}")
            bf16r(a, v, v)
            a(f"v_cvt_f16_f32 v{v}, v{v}")
            a(f"ds_write_b16 v95, v{v} offset:{c*UC + k*512}")
    a("s_waitcnt vmcnt(0)")

    def copies(base, chunk_off):
        for c in range(3):
            b = base + 8 * c
            for k in range(1, 7):
                a(f"v_mov_b32 v{105+k}, v{b+k}")
            for k in range(7):
                a(f"v_alignbit_b32 v{114+k}, v{b+k+1}, v{b+k}, 16")
            for k in range(1, 7):
                a(f"v_mov_b32 v{123+k}, v{114+k}")
            for sg in range(8):
                m = sg // 2
                if sg % 2 == 0:
                    src = (b + m) if m % 2 == 0 else (105 + m)
                else:
                    src = (114 + m) if m % 2 == 0 else (123 + m)
                assert src % 2 == 0
                off = c * KCC + sg * 4160 + chunk_off
                if off < 65536:
                    a(f"ds_write_b128 v5, v[{src}:{src+3}] offset:{off}")
                else:
                    a(f"ds_write_b128 v131, v[{src}:{src+3}] offset:{off-65536}")
    a("v_add_u32 v131, 0x10000, v5")
    copies(KR, 0)
    a("v_cmp_gt_u32 vcc, 2, v0\ns_and_saveexec_b64 s[48:49], vcc\ns_cbranch_execz L_k2_tail_done")
    copies(KR + 24, 4096)
    a.label("L_k2_tail_done")
    a("s_mov_b64 exec, s[48:49]")
    a("s_waitcnt lgkmcnt(0)\ns_barrier")

    a(f"""
    v_and_b32 v3, 15, v2
    v_lshrrev_b32 v4, 4, v2
    v_lshrrev_b32 v5, 1, v4
    v_and_b32 v6, 1, v4
    v_lshlrev_b32 v5, 4, v5           ; 16*dl
    v_lshlrev_b32 v6, 3, v6           ; 8*gh
    v_add_u32 v7, v5, v3
    v_sub_u32 v7, v7, v6              ; Lc
    v_sub_u32 v7, 2048, v7            ; X0
    v_and_b32 v8, 7, v7               ; sigma
    v_sub_u32 v7, v7, v8
    v_lshlrev_b32 v7, 1, v7
    v_mul_u32_u24 v8, 4160, v8
    v_add_u32 v7, v7, v8              ; laneA
    s_lshl_b32 s4, s3, 7              ; 64*e0 with e0 = 2w
    s_add_u32 s5, s4, {7*512 + 64}    ; subtract 512*7 + 64*(2w+1)
    v_subrev_u32 v7, s5, v7
    v_lshlrev_b32 v9, 4, v3           ; 16 n
    v_sub_u32 v9, v9, v5
    v_add_u32 v9, v9, v6
    v_add_u32 v9, 256, v9
    v_lshlrev_b32 v9, 1, v9
    s_add_u32 s5, s4, 64
    v_subrev_u32 v9, s5, v9
    v_add_u32 v9, {U}, v9
    """)
    ACC = 100
    FA = 16
    FB = 196
    for r in range(96):
        a(f"v_mov_b32 v{ACC+r}, 0")
    steps = [(c, h) for c in range(3) for h in range(2)]

    def loads(si):
        c, h = steps[si]
        out = []
        sa = (si % 2) * 32
        sb = 64 + (si % 2) * 32
        for q in range(8):
            off = 512 * (7 - q) + 64 * (1 - h)
            out.append(f"ds_read_b128 a[{sa+4*q}:{sa+4*q+3}], v{10+c} offset:{off}")
        for m in range(8):
            off = 512 * m + 64 * (1 - h) + c * UC
            out.append(f"ds_read_b128 a[{sb+4*m}:{sb+4*m+3}], v9 offset:{off}")
        return out
    a(f"v_mov_b32 v10, v7\nv_add_u32 v11, {KCC}, v7\nv_add_u32 v12, {2*KCC}, v7")
    for ld in loads(0):
        a(ld)
    for si, (c, h) in enumerate(steps):
        nxt = loads(si + 1) if si + 1 < len(steps) else []
        a("s_waitcnt lgkmcnt(0)")
        sa = (si % 2) * 32
        sb = 64 + (si % 2) * 32
        k = 0
        for j in range(8):
            for q in range(j + 1):
                m = j - q
                acc = ACC + c * 32 + j * 4
                a(f"v_mfma_f32_16x16x32_f16 v[{acc}:{acc+3}], a[{sa+4*q}:{sa+4*q+3}], a[{sb+4*m}:{sb+4*m+3}], v[{acc}:{acc+3}]")
                if k < len(nxt):
                    a(nxt[k])
                k += 1
    a("s_nop 7\ns_nop 7")
    a("s_barrier")
    a(f"""
    v_lshlrev_b32 v3, 4, v2
    s_lshl_b32 s4, s3, 13
    v_add_u32 v4, s4, v3
    """)
    a("v_add_u32 v5, 0x10000, v4")
    for c in range(3):
        for j in range(8):
            acc = ACC + c * 32 + j * 4
            off = c * 32768 + j * 1024
            if off < 65536:
                a(f"ds_write_b128 v4, v[{acc}:{acc+3}] offset:{off}")
            else:
                a(f"ds_write_b128 v5, v[{acc}:{acc+3}] offset:{off-65536}")
    a("s_waitcnt lgkmcnt(0)\ns_barrier")
    a(f"""
    s_lshl_b32 s4, s3, 11
    v_add_u32 v4, s4, v3
    v_add_u32 v5, 0x10000, v4
    """)
    RD = 16
    for c in range(3):
        for jj in range(2):
            for src in range(4):
                off = c * 32768 + src * 8192 + jj * 1024
                r = RD + ((c * 2 + jj) * 4 + src) * 4
                if off < 65536:
                    a(f"ds_read_b128 v[{r}:{r+3}], v4 offset:{off}")
                else:
                    a(f"ds_read_b128 v[{r}:{r+3}], v5 offset:{off-65536}")
    a(f"""
    v_and_b32 v6, 15, v2
    v_lshrrev_b32 v7, 4, v2
    v_lshlrev_b32 v8, 4, v6
    v_lshlrev_b32 v9, 2, v7
    v_add_u32 v8, v8, v9              ; 16n + 4g
    s_lshl_b32 s4, s3, 9              ; 256*2w
    v_add_u32 v8, s4, v8              ; t (jj=0)
    v_lshlrev_b32 v8, 1, v8           ; bytes
    v_add_u32 v9, {U + 512}, v8       ; u addr
    v_add_u32 v10, {X}, v8            ; x addr
    v_lshrrev_b32 v11, 1, v6
    v_lshlrev_b32 v11, 6, v11         ; (n>>1)*64
    v_lshlrev_b32 v12, 4, v7          ; g*16
    v_add_u32 v11, v11, v12
    v_and_b32 v12, 1, v6
    v_lshlrev_b32 v12, 3, v12
    v_add_u32 v11, v11, v12
    s_mul_i32 s5, s2, {3*4096}
    s_lshl_b32 s4, s3, 10             ; (8j)*64 with j=2w -> 1024 w
    s_add_u32 s5, s5, s4
    s_add_u32 s5, s5, {WS_HT}
    """)
    UX = 120
    for c in range(3):
        for jj in range(2):
            i = c * 2 + jj
            a(f"ds_read_b64 v[{UX+2*i}:{UX+2*i+1}], v9 offset:{c*UC + jj*512}")
            a(f"ds_read_b64 v[{UX+12+2*i}:{UX+12+2*i+1}], v10 offset:{c*XC + jj*512}")
    a("s_waitcnt lgkmcnt(0)")
    for c in range(3):
        a(f"v_lshlrev_b32 v{200+c}, 16, v{200+c}")
    for c in range(3):
        for jj in range(2):
            i = c * 2 + jj
            r0 = RD + i * 16
            for r in range(4):
                a(f"v_add_f32 v{r0+r}, v{r0+r}, v{r0+4+r}")
                a(f"v_add_f32 v{r0+8+r}, v{r0+8+r}, v{r0+12+r}")
                a(f"v_add_f32 v{r0+r}, v{r0+r}, v{r0+8+r}")
                a(f"v_mul_f32 v{r0+r}, v{r0+r}, v{204+c}")
                bf16r(a, r0 + r, r0 + r)
                ur = UX + 2 * i + r // 2
                xr = UX + 12 + 2 * i + r // 2
                if r % 2 == 0:
                    a(f"v_cvt_f32_f16 v150, v{ur}")
                    a(f"v_lshlrev_b32 v151, 16, v{xr}")
                else:
                    a(f"v_cvt_f32_f16_sdwa v150, v{ur} dst_sel:DWORD dst_unused:UNUSED_PAD src0_sel:WORD_1")
                    a(f"v_and_b32 v151, 0xffff0000, v{xr}")
                a(f"v_mul_f32 v150, v150, v{200+c}")
                bf16r(a, 150, 150)
                a(f"v_add_f32 v150, v150, v{r0+r}")
                bf16r(a, 150, 150)
                a(f"v_add_f32 v{r0+r}, v151, v150")
            a(f"v_cvt_pk_bf16_f32 v152, v{r0}, v{r0+1}")
            a(f"v_cvt_pk_bf16_f32 v153, v{r0+2}, v{r0+3}")
            a(f"s_add_u32 s6, s5, {c*4096 + jj*512}")
            a(f"buffer_store_dwordx2 v[152:153], v11, s[24:27], s6 offen")
            a("s_nop 1")
    a.label("L_k2_end")
    a("s_endpgm")
    return name, 192, LDS, (256, 128)


def gen_k3(a):
    name = "ln2_kernel"
    kernel_header(a, name)
    T1 = 0
    T2 = 9216
    a("s_cmp_ge_u32 s2, 256\ns_cbranch_scc1 L_k3_end")
    load_ptr(a, "ws", 6)
    a("v_lshrrev_b32 v1, 6, v0\nv_and_b32 v2, 63, v0\ns_nop 0\nv_readfirstlane_b32 s3, v1")
    a("s_waitcnt lgkmcnt(0)")
    srd(a, 24, 6, WS_SIZE)
    a(f"""
    v_lshlrev_b32 v3, 12, v0          ; d*4096
    s_lshl_b32 s4, s2, 4
    s_add_u32 s5, s4, {WS_HT}
    buffer_load_dwordx4 v[8:11], v3, s[24:27], s5 offen
    s_add_u32 s6, s5, {256*4096}
    buffer_load_dwordx4 v[12:15], v3, s[24:27], s6 offen
    v_cmp_gt_u32 vcc, 64, v0
    s_and_saveexec_b64 s[48:49], vcc
    s_add_u32 s6, s5, {512*4096}
    buffer_load_dwordx4 v[16:19], v3, s[24:27], s6 offen
    s_mov_b64 exec, s[48:49]
    v_lshlrev_b32 v4, 1, v0           ; d*2
    s_waitcnt vmcnt(0)
    """)
    for k in range(3):
        if k == 2:
            a("s_and_saveexec_b64 s[48:49], vcc")
        for i in range(8):
            r = 8 + 4 * k + i // 2
            op = "ds_write_b16" if i % 2 == 0 else "ds_write_b16_d16_hi"
            a(f"{op} v4, v{r} offset:{T1 + i*1152 + k*512}")
        if k == 2:
            a("s_mov_b64 exec, s[48:49]")
    a("s_waitcnt lgkmcnt(0)\ns_barrier")
    a(f"""
    v_lshrrev_b32 v5, 5, v2
    s_lshl_b32 s4, s3, 1
    v_add_u32 v5, s4, v5              ; i (0..7)
    v_and_b32 v6, 31, v2
    v_mul_u32_u24 v7, 1152, v5
    v_mul_u32_u24 v6, 36, v6
    v_add_u32 v7, v7, v6
    """)
    for i in range(9):
        a(f"ds_read_b32 v{20+i}, v7 offset:{T1 + 4*i}")
    a("s_waitcnt lgkmcnt(0)")
    ln_stats(a, 20, 30, 31, 32)
    a("""
    v_readlane_b32 s8, v30, 31
    v_readlane_b32 s9, v31, 31
    v_readlane_b32 s10, v30, 63
    v_readlane_b32 s11, v31, 63
    v_cmp_gt_u32 vcc, 32, v2
    v_mov_b32 v30, s10
    v_mov_b32 v31, s11
    v_mov_b32 v33, s8
    v_mov_b32 v34, s9
    v_cndmask_b32 v30, v30, v33, vcc
    v_cndmask_b32 v31, v31, v34, vcc
    """)
    a(f"""
    s_lshr_b32 s4, s2, 2
    s_lshl_b32 s4, s4, 5
    s_and_b32 s5, s2, 3
    s_lshl_b32 s5, s5, 2
    s_add_u32 s4, s4, s5
    v_and_b32 v8, 3, v5
    v_lshrrev_b32 v9, 2, v5
    v_lshlrev_b32 v9, 4, v9
    v_add_u32 v8, v8, v9
    v_add_u32 v8, s4, v8
    v_mul_u32_u24 v8, 1152, v8
    v_add_u32 v8, v8, v6
    s_mov_b32 s12, {WS_H}
    buffer_store_dwordx4 v[20:23], v8, s[24:27], s12 offen
    buffer_store_dwordx4 v[24:27], v8, s[24:27], s12 offen offset:16
    buffer_store_dword v28, v8, s[24:27], s12 offen offset:32
    """)
    for i in range(9):
        a(f"v_lshlrev_b32 v36, 16, v{20+i}")
        a(f"v_and_b32 v37, 0xffff0000, v{20+i}")
        for v in (36, 37):
            a(f"v_sub_f32 v{v}, v{v}, v30")
            bf16r(a, v, v)
            a(f"v_mul_f32 v{v}, v{v}, v31")
        a(f"v_cvt_pk_bf16_f32 v{40+i}, v36, v37")
        a(f"ds_write_b32 v7, v{40+i} offset:{T2 + 4*i}")
    a("s_waitcnt lgkmcnt(0)\ns_barrier")
    for k in range(3):
        if k == 2:
            a("v_cmp_gt_u32 vcc, 64, v0\ns_and_saveexec_b64 s[48:49], vcc\ns_cbranch_execz L_k3_end")
        for i in range(8):
            a(f"ds_read_u16 v{54+i}, v4 offset:{T2 + i*1152 + k*512}")
        a("s_waitcnt lgkmcnt(0)")
        for i in range(4):
            a(f"v_lshl_or_b32 v{50+i}, v{55+2*i}, 16, v{54+2*i}")
        a(f"s_lshl_b32 s4, s2, 4\ns_add_u32 s5, s4, {WS_HNT + k*256*4096}")
        a(f"buffer_store_dwordx4 v[50:53], v3, s[24:27], s5 offen")
        a("s_nop 1")
    a.label("L_k3_end")
    a("s_endpgm")
    return name, 256, 18432, 64


def gen_gemm(a, kind):
    g1 = kind == "g1"
    name = "gemm1_kernel" if g1 else "gemm2_kernel"
    L = "L_" + kind
    kernel_header(a, name)
    NST = 16 if g1 else 18
    PITCH_R = 4096 if g1 else 9216
    PITCH_O = 9216 if g1 else 4096
    OROW = 288 if g1 else 256
    R_BYTES = 18432
    O_BYTES = 64 * OROW
    STAGE = R_BYTES + O_BYTES
    NO = 5 if g1 else 4
    NT = 41 if g1 else 36
    vRo = [1, 2, 3, 4, 5]
    vOo = [6, 7, 8, 9, 10]
    vRr = [[11, 12], [13, 14]]
    vOr = [[15, 16], [17, 18], [19, 20], [21, 22], [23, 24]]
    ACC = 32
    AF = 0
    BF = 48
    a(f"s_cmp_ge_u32 s2, 256\ns_cbranch_scc1 {L}_end")
    load_ptr(a, "ws", 4)
    load_ptr(a, "w1" if g1 else "w2", 6)
    a("""
    v_lshrrev_b32 v25, 6, v0
    v_and_b32 v0, 63, v0
    s_nop 0
    v_readfirstlane_b32 s24, v25
    s_and_b32 s30, s2, 7
    s_lshr_b32 s31, s2, 3
    """)
    if g1:
        a("""
        s_lshr_b32 s32, s30, 2
        s_and_b32 s33, s30, 3
        s_lshl_b32 s33, s33, 3
        s_lshr_b32 s34, s31, 2
        s_add_u32 s33, s33, s34
        s_and_b32 s34, s31, 3
        """)
    else:
        a("""
        s_lshr_b32 s32, s30, 1
        s_and_b32 s33, s30, 1
        s_lshl_b32 s33, s33, 3
        s_lshr_b32 s34, s31, 2
        s_add_u32 s33, s33, s34
        s_and_b32 s34, s31, 3
        """)
    a("s_waitcnt lgkmcnt(0)")
    srd(a, 12, 4, WS_SIZE)
    srd(a, 16, 6, SZ["w1"])
    KLEN = 1024 if g1 else 1152
    a(f"""
    s_mul_i32 s25, s34, {144*PITCH_R}
    s_mul_i32 s35, s32, {KLEN*2}
    s_add_u32 s25, s25, s35
    s_add_u32 s25, s25, {WS_HNT if g1 else WS_G}
    s_mul_i32 s26, s32, {KLEN*PITCH_O}
    s_mul_i32 s35, s33, {OROW}
    s_add_u32 s26, s26, s35
    """)
    a(f"""
    v_lshrrev_b32 v25, 3, v0
    v_lshrrev_b32 v26, 4, v0
    s_and_b32 s35, s24, 1
    s_lshl_b32 s35, s35, 2
    v_add_u32 v26, s35, v26
    v_and_b32 v26, 7, v26
    v_and_b32 v27, 7, v0
    v_xor_b32 v27, v27, v26
    v_lshlrev_b32 v27, 4, v27
    s_lshl_b32 s35, s24, 3
    v_add_u32 v28, s35, v25
    s_mov_b32 s36, {PITCH_R}
    v_mul_lo_u32 v28, v28, s36
    v_add_u32 v{vRo[0]}, v28, v27
    v_add_u32 v{vRo[1]}, {32*PITCH_R}, v{vRo[0]}
    v_add_u32 v{vRo[2]}, {64*PITCH_R}, v{vRo[0]}
    v_add_u32 v{vRo[3]}, {96*PITCH_R}, v{vRo[0]}
    s_lshl_b32 s35, s24, 1
    v_lshrrev_b32 v26, 4, v0
    v_add_u32 v26, s35, v26
    v_and_b32 v26, 7, v26
    v_and_b32 v27, 7, v0
    v_xor_b32 v27, v27, v26
    v_lshlrev_b32 v27, 4, v27
    s_lshl_b32 s35, s24, 2
    s_add_u32 s35, s35, 128
    v_add_u32 v28, s35, v25
    v_mul_lo_u32 v28, v28, s36
    v_add_u32 v{vRo[4]}, v28, v27
    """)
    if g1:
        a(f"s_mov_b32 s36, {(1 << 32) // 18 + 1}\ns_mov_b32 s37, {PITCH_O}")
        for m in range(5):
            if m < 4:
                a(f"s_lshl_b32 s35, s24, 6\ns_add_u32 s35, s35, {256*m}")
            else:
                a(f"s_lshl_b32 s35, s24, 5\ns_add_u32 s35, s35, 1024")
            a(f"""
            v_add_u32 v25, s35, v0
            v_mul_hi_u32 v26, v25, s36
            v_mul_u32_u24 v27, 18, v26
            v_sub_u32 v27, v25, v27
            v_mul_lo_u32 v26, v26, s37
            v_lshlrev_b32 v27, 4, v27
            v_add_u32 v{vOo[m]}, v26, v27
            """)
    else:
        a(f"""
        v_lshrrev_b32 v25, 4, v0
        s_and_b32 s35, s24, 1
        s_lshl_b32 s35, s35, 2
        v_add_u32 v26, s35, v25
        v_and_b32 v27, 15, v0
        v_lshrrev_b32 v28, 1, v27
        v_xor_b32 v28, v28, v26
        v_lshlrev_b32 v28, 5, v28
        v_and_b32 v27, 1, v27
        v_lshlrev_b32 v27, 4, v27
        v_add_u32 v28, v28, v27
        s_lshl_b32 s35, s24, 2
        v_add_u32 v25, s35, v25
        v_lshlrev_b32 v25, 12, v25
        v_add_u32 v{vOo[0]}, v25, v28
        v_add_u32 v{vOo[1]}, {16*PITCH_O}, v{vOo[0]}
        v_add_u32 v{vOo[2]}, {32*PITCH_O}, v{vOo[0]}
        v_add_u32 v{vOo[3]}, {48*PITCH_O}, v{vOo[0]}
        """)
    a(f"""
    s_and_b32 s37, s24, 1
    s_lshr_b32 s38, s24, 1
    v_and_b32 v25, 15, v0
    v_lshrrev_b32 v26, 4, v0
    s_lshl_b32 s35, s37, 2
    v_add_u32 v27, s35, v26
    v_lshrrev_b32 v28, 1, v25
    v_xor_b32 v27, v27, v28
    v_lshlrev_b32 v27, 4, v27
    v_lshlrev_b32 v28, 7, v25
    v_add_u32 v27, v27, v28
    """)
    if g1:
        a(f"""
        s_mul_i32 s35, s38, {4*2048}
        v_add_u32 v{vRr[0][0]}, s35, v27
        s_mul_i32 s35, s38, {5*2048}
        v_subrev_u32 v{vRr[1][0]}, s35, v27
        """)
    else:
        a(f"v_mov_b32 v{vRr[0][0]}, v27\nv_mov_b32 v{vRr[1][0]}, v27")
    a(f"v_add_u32 v{vRr[0][1]}, {2*STAGE}, v{vRr[0][0]}\nv_add_u32 v{vRr[1][1]}, {2*STAGE}, v{vRr[1][0]}")
    a(f"""
    v_lshrrev_b32 v27, 2, v25
    v_lshlrev_b32 v28, 2, v26
    v_add_u32 v28, v28, v27           ; 4g + r
    s_lshl_b32 s35, s37, 5
    v_add_u32 v29, s35, v28           ; row
    v_mul_u32_u24 v29, {OROW}, v29
    v_and_b32 v30, 3, v25
    v_lshlrev_b32 v30, 3, v30
    v_add_u32 v29, v29, v30
    v_add_u32 v29, {R_BYTES}, v29
    """)
    if g1:
        a(f"s_mul_i32 s35, s38, 160\nv_add_u32 v30, s35, v29")
        for c in range(4):
            a(f"v_add_u32 v{vOr[c][0]}, {32*c}, v30")
        a(f"v_add_u32 v{vOr[4][0]}, 128, v29")
    else:
        a("v_and_b32 v28, 7, v28\ns_lshl_b32 s35, s38, 2")
        for c in range(4):
            a(f"""
            s_add_u32 s36, s35, {c}
            v_xor_b32 v30, s36, v28
            v_lshlrev_b32 v30, 5, v30
            v_add_u32 v{vOr[c][0]}, v29, v30
            """)
    for c in range(NO):
        a(f"v_add_u32 v{vOr[c][1]}, {2*STAGE}, v{vOr[c][0]}")
    a(f"""
    s_lshl_b32 s40, s24, 10
    s_lshl_b32 s41, s24, 9
    s_add_u32 s43, s41, {R_BYTES + 16384}
    s_add_u32 s41, s41, 16384
    s_add_u32 s42, s40, {R_BYTES}
    s_mov_b32 s44, -1
    s_mov_b32 s45, 0
    """)
    for i in range(NT * 4):
        a(f"v_mov_b32 v{ACC+i}, 0")
    NDMA = 10 if g1 else 9

    def dma_ops(slot):
        ops = []
        sb = slot * STAGE
        for m in range(4):
            ops.append(f"s_add_u32 m0, s40, {sb + m*4096}\ns_nop 0\nbuffer_load_dwordx4 v{vRo[m]}, s[12:15], s25 offen lds")
        ops.append(f"s_add_u32 m0, s41, {sb}\ns_mov_b64 exec, s[44:45]\nbuffer_load_dwordx4 v{vRo[4]}, s[12:15], s25 offen lds\ns_mov_b64 exec, -1")
        for m in range(4):
            ops.append(f"s_add_u32 m0, s42, {sb + m*4096}\ns_nop 0\nbuffer_load_dwordx4 v{vOo[m]}, s[16:19], s26 offen lds")
        if g1:
            ops.append(f"s_add_u32 m0, s43, {sb}\ns_mov_b64 exec, s[44:45]\nbuffer_load_dwordx4 v{vOo[4]}, s[16:19], s26 offen lds\ns_mov_b64 exec, -1")
        ops.append(f"s_add_u32 s25, s25, 128\ns_add_u32 s26, s26, {64*PITCH_O}")
        return ops

    def r_read(s, i):
        slot = s % 4
        buf = (9 * s + i) % 12
        off = (slot % 2) * STAGE + i * 2048
        return f"ds_read_b128 a[{AF+4*buf}:{AF+4*buf+3}], v{vRr[0 if i < 5 else 1][slot//2]} offset:{off}"

    def o_reads(s):
        slot = s % 4
        out = []
        for c in range(NO):
            base = BF + (s % 2) * NO * 4 + c * 4
            off = (slot % 2) * STAGE
            out.append(f"ds_read_b64_tr_b16 a[{base}:{base+1}], v{vOr[c][slot//2]} offset:{off}")
            out.append(f"ds_read_b64_tr_b16 a[{base+2}:{base+3}], v{vOr[c][slot//2]} offset:{off + 16*OROW}")
        return out

    def acc_idx(i, c):
        return ACC + (i * 4 + c) * 4 if c < 4 else ACC + (36 + i) * 4

    def mfma(s, i, c):
        buf = (9 * s + i) % 12
        acc = acc_idx(i, c)
        ob = BF + (s % 2) * NO * 4 + c * 4
        ra = f"a[{AF+4*buf}:{AF+4*buf+3}]"
        oa = f"a[{ob}:{ob+3}]"
        if g1:
            return f"v_mfma_f32_16x16x32_bf16 v[{acc}:{acc+3}], {oa}, {ra}, v[{acc}:{acc+3}]"
        return f"v_mfma_f32_16x16x32_bf16 v[{acc}:{acc+3}], {ra}, {oa}, v[{acc}:{acc+3}]"

    for s in range(4):
        for op in dma_ops(s):
            a(op)
    a(f"s_waitcnt vmcnt({3*NDMA})\ns_barrier")
    for r in o_reads(0):
        a(r)
    for i in range(9):
        a(r_read(0, i))
    a(f"s_waitcnt vmcnt({2*NDMA}) lgkmcnt(0)\ns_barrier")
    for s in range(NST):
        do_dma = s + 4 < NST
        nxt = s + 1 < NST
        seq = []
        for i in range(9):
            for c in range(4):
                seq.append((i, c))
            if g1 and i < 5:
                seq.append((i, 4))
        n = len(seq)
        extras = [[] for _ in range(n + 1)]
        grp_end = {}
        for k, (i, c) in enumerate(seq):
            grp_end[i] = k + 1
        if nxt:
            orr = o_reads(s + 1)
            early = [r_read(s + 1, i) for i in range(3)]
            lst = []
            for k in range(max(len(orr), 3)):
                if k < 3:
                    lst.append(early[k])
            lst = orr[:2] + [early[0]] + orr[2:4] + [early[1]] + orr[4:6] + [early[2]] + orr[6:]
            for k, r in enumerate(lst):
                extras[k + 1].append(r)
            for i in range(6):
                extras[grp_end[i]].append(r_read(s + 1, i + 3))
        if do_dma:
            ops = dma_ops(s % 4)
            p0 = 14
            for k, op in enumerate(ops):
                extras[min(n, p0 + 2 * k)].append(op)
        for k, (i, c) in enumerate(seq):
            a(mfma(s, i, c))
            for e in extras[k + 1]:
                a(e)
        if nxt:
            last_issued = min(s + 4, NST - 1)
            nn = max(0, last_issued - (s + 2)) * NDMA
            a(f"s_waitcnt vmcnt({nn}) lgkmcnt(0)\ns_barrier")
    a("s_nop 7\ns_nop 7\ns_barrier")
    tiles = [(i, c) for i in range(9) for c in range(4)] + ([(i, 4) for i in range(5)] if g1 else [])
    half = (len(tiles) + 1) // 2
    setA, setB = tiles[:half], tiles[half:]
    a(f"""
    v_lshlrev_b32 v25, 4, v0
    s_mul_i32 s35, s38, 45056
    v_add_u32 v25, s35, v25
    s_cmp_eq_u32 s37, 0
    s_cbranch_scc0 {L}_m1
    """)
    for k, (i, c) in enumerate(setB):
        r = acc_idx(i, c)
        a(f"ds_write_b128 v25, v[{r}:{r+3}] offset:{k*1024}")
    a(f"s_waitcnt lgkmcnt(0)\ns_barrier")
    TMP = 200
    for k0 in range(0, len(setA), 12):
        grp = setA[k0:k0+12]
        for k, (i, c) in enumerate(grp):
            a(f"ds_read_b128 v[{TMP+4*k}:{TMP+4*k+3}], v25 offset:{22528 + (k0+k)*1024}")
        a("s_waitcnt lgkmcnt(0)")
        for k, (i, c) in enumerate(grp):
            r = acc_idx(i, c)
            for e in range(4):
                a(f"v_add_f32 v{r+e}, v{r+e}, v{TMP+4*k+e}")
    a(f"s_branch {L}_m2")
    a.label(f"{L}_m1")
    for k, (i, c) in enumerate(setA):
        r = acc_idx(i, c)
        a(f"ds_write_b128 v25, v[{r}:{r+3}] offset:{22528 + k*1024}")
    a(f"s_waitcnt lgkmcnt(0)\ns_barrier")
    for k0 in range(0, len(setB), 12):
        grp = setB[k0:k0+12]
        for k, (i, c) in enumerate(grp):
            a(f"ds_read_b128 v[{TMP+4*k}:{TMP+4*k+3}], v25 offset:{(k0+k)*1024}")
        a("s_waitcnt lgkmcnt(0)")
        for k, (i, c) in enumerate(grp):
            r = acc_idx(i, c)
            for e in range(4):
                a(f"v_add_f32 v{r+e}, v{r+e}, v{TMP+4*k+e}")
    a.label(f"{L}_m2")
    a("v_and_b32 v26, 15, v0\nv_lshrrev_b32 v27, 4, v0")
    if g1:
        a(f"""
        s_mul_i32 s35, s32, {576*4608*4}
        s_mul_i32 s36, s34, {144*4608*4}
        s_add_u32 s35, s35, s36
        s_mul_i32 s36, s33, {144*4}
        s_add_u32 s35, s35, s36
        s_add_u32 s35, s35, {WS_P1}
        s_mov_b32 s36, {4608*4}
        v_mul_lo_u32 v28, v26, s36
        v_lshlrev_b32 v29, 4, v27
        v_add_u32 v28, v28, v29
        s_mul_i32 s46, s38, {4*16*4608*4}
        s_mul_i32 s47, s38, {5*16*4608*4}
        s_add_u32 s46, s35, s46
        s_sub_u32 s47, s35, s47
        s_mul_i32 s39, s38, {5*64}
        """)

        def store(i, c):
            r = acc_idx(i, c)
            b = "s46" if i < 5 else "s47"
            if c < 4:
                a(f"s_add_u32 s36, {b}, {i*16*4608*4 + c*64}\ns_add_u32 s36, s36, s39")
            else:
                a(f"s_add_u32 s36, {b}, {i*16*4608*4 + 256}")
            a(f"buffer_store_dwordx4 v[{r}:{r+3}], v28, s[12:15], s36 offen")
    else:
        a(f"""
        s_mul_i32 s35, s32, {2048*576*4}
        s_mul_i32 s36, s33, {128*576*4}
        s_add_u32 s35, s35, s36
        s_mul_i32 s36, s38, {64*576*4}
        s_add_u32 s35, s35, s36
        s_mul_i32 s36, s34, {144*4}
        s_add_u32 s35, s35, s36
        s_add_u32 s35, s35, {WS_P2}
        v_mul_u32_u24 v28, {576*4}, v26
        v_lshlrev_b32 v29, 4, v27
        v_add_u32 v28, v28, v29
        """)

        def store(i, c):
            r = acc_idx(i, c)
            a(f"s_add_u32 s36, s35, {c*16*576*4 + i*64}")
            a(f"buffer_store_dwordx4 v[{r}:{r+3}], v28, s[12:15], s36 offen")
    a(f"s_cmp_eq_u32 s37, 0\ns_cbranch_scc0 {L}_s1")
    for (i, c) in setA:
        store(i, c)
    a(f"s_branch {L}_end")
    a.label(f"{L}_s1")
    if g1:
        pass
    for (i, c) in setB:
        store(i, c)
    a.label(f"{L}_end")
    a("s_endpgm")
    return name, 256, 4 * STAGE, (256, 96)


def gen_k4(a):
    return gen_gemm(a, "g1")


def gen_k5(a):
    return gen_gemm(a, "g2")


def gelu_tanh(a, x, t1, t2):
    c0 = 0.7978845608028654 * 2 * 1.4426950408889634
    c1 = c0 * 0.044715
    a(f"v_mul_f32 v{t1}, v{x}, v{x}")
    a(f"v_mov_b32 v{t2}, {f32hex(-c0)}")
    a(f"v_fmac_f32 v{t2}, {f32hex(-c1)}, v{t1}")
    a(f"v_mul_f32 v{t1}, v{t2}, v{x}")
    a(f"v_exp_f32 v{t1}, v{t1}")
    a("s_nop 0")
    a(f"v_add_f32 v{t1}, 1.0, v{t1}")
    a(f"v_rcp_f32 v{t1}, v{t1}")
    a("s_nop 0")
    a(f"v_mul_f32 v{x}, v{x}, v{t1}")


def gen_k4b(a):
    name = "red1_kernel"
    kernel_header(a, name)
    a("s_cmp_ge_u32 s2, 2592\ns_cbranch_scc1 L_k4b_end")
    load_ptr(a, "ws", 6)
    load_ptr(a, "b1", 8)
    a("s_waitcnt lgkmcnt(0)")
    srd(a, 24, 6, WS_SIZE)
    srd(a, 28, 8, SZ["b1"])
    a(f"""
    s_lshl_b32 s4, s2, 8
    v_add_u32 v1, s4, v0              ; idx4 = d*1152 + f4
    v_lshlrev_b32 v2, 4, v1
    s_mov_b32 s5, {WS_P1}
    s_mov_b32 s6, {WS_P1 + 576*4608*4}
    buffer_load_dwordx4 v[4:7], v2, s[24:27], s5 offen
    buffer_load_dwordx4 v[8:11], v2, s[24:27], s6 offen
    s_mov_b32 s7, {(1 << 32) // 1152 + 1}
    v_mul_hi_u32 v3, v1, s7           ; d
    v_mul_u32_u24 v12, 1152, v3
    v_sub_u32 v12, v1, v12            ; f4
    v_lshlrev_b32 v13, 3, v12
    buffer_load_dwordx2 v[14:15], v13, s[28:31], 0 offen
    s_waitcnt vmcnt(0)
    """)
    for r in range(4):
        a(f"v_add_f32 v{4+r}, v{4+r}, v{8+r}")
        bf16r(a, 4 + r, 4 + r)
        if r % 2 == 0:
            a(f"v_lshlrev_b32 v16, 16, v{14 + r//2}")
        else:
            a(f"v_and_b32 v16, 0xffff0000, v{14 + r//2}")
        a(f"v_add_f32 v{4+r}, v{4+r}, v16")
        bf16r(a, 4 + r, 4 + r)
        gelu_tanh(a, 4 + r, 17, 18)
    a(f"""
    v_cvt_pk_bf16_f32 v20, v4, v5
    v_cvt_pk_bf16_f32 v21, v6, v7
    v_lshrrev_b32 v22, 3, v12
    v_lshlrev_b32 v22, 6, v22
    v_and_b32 v23, 3, v12
    v_lshlrev_b32 v23, 4, v23
    v_add_u32 v22, v22, v23
    v_bfe_u32 v23, v12, 2, 1
    v_lshlrev_b32 v23, 3, v23
    v_add_u32 v22, v22, v23
    v_mul_u32_u24 v23, 9216, v3
    v_add_u32 v22, v22, v23
    s_mov_b32 s5, {WS_G}
    buffer_store_dwordx2 v[20:21], v22, s[24:27], s5 offen
    """)
    a.label("L_k4b_end")
    a("s_endpgm")
    return name, 2592, 0, 32


def gen_k5b(a):
    name = "red2_kernel"
    kernel_header(a, name)
    a("s_cmp_ge_u32 s2, 1152\ns_cbranch_scc1 L_k5b_end")
    load_ptr(a, "ws", 6)
    load_ptr(a, "b2", 8)
    load_ptr(a, "out", 10)
    a("s_waitcnt lgkmcnt(0)")
    srd(a, 24, 6, WS_SIZE)
    srd(a, 28, 8, SZ["b2"])
    srd(a, 32, 10, SZ["out"])
    a(f"""
    s_lshl_b32 s4, s2, 8
    v_add_u32 v1, s4, v0              ; idx4 = s*144 + d4
    v_lshlrev_b32 v2, 4, v1
    """)
    for q in range(4):
        a(f"s_mov_b32 s5, {WS_P2 + q*2048*576*4}")
        a(f"buffer_load_dwordx4 v[{4+4*q}:{7+4*q}], v2, s[24:27], s5 offen")
    a(f"""
    v_lshlrev_b32 v3, 3, v1
    s_mov_b32 s5, {WS_H}
    buffer_load_dwordx2 v[20:21], v3, s[24:27], s5 offen
    s_mov_b32 s7, {(1 << 32) // 144 + 1}
    v_mul_hi_u32 v22, v1, s7          ; s
    v_lshlrev_b32 v22, 1, v22
    buffer_load_ushort v23, v22, s[28:31], 0 offen
    s_waitcnt vmcnt(0)
    v_lshlrev_b32 v23, 16, v23
    """)
    for r in range(4):
        a(f"v_add_f32 v{4+r}, v{4+r}, v{8+r}")
        a(f"v_add_f32 v{12+r}, v{12+r}, v{16+r}")
        a(f"v_add_f32 v{4+r}, v{4+r}, v{12+r}")
        bf16r(a, 4 + r, 4 + r)
        a(f"v_add_f32 v{4+r}, v{4+r}, v23")
        bf16r(a, 4 + r, 4 + r)
        if r % 2 == 0:
            a(f"v_lshlrev_b32 v24, 16, v{20 + r//2}")
        else:
            a(f"v_and_b32 v24, 0xffff0000, v{20 + r//2}")
        a(f"v_add_f32 v{4+r}, v{4+r}, v24")
    a("""
    v_cvt_pk_bf16_f32 v26, v4, v5
    v_cvt_pk_bf16_f32 v27, v6, v7
    buffer_store_dwordx2 v[26:27], v3, s[32:35], 0 offen
    """)
    a.label("L_k5b_end")
    a("s_endpgm")
    return name, 1152, 0, 32


ALL_KERNELS = [gen_k1, gen_k2, gen_k3, gen_k4, gen_k4b, gen_k5, gen_k5b]
```

```python
import sys
from asmlib import *

KN = "sequential_preLN__ssm_conv_s4d__mixer_token_mlp__prompt"

WS_STATS1 = 0x000000
WS_KR = 0x010000
KR_PITCH = 4160
WS_KSC = 0x3F0000
WS_HT = 0x400000
WS_HNT = 0x700000
WS_H = 0xA00000
WS_G = 0xD00000
WS_P1 = 0x1400000
WS_P2 = 0x2900000
WS_STAMP = 0x8000000
WS_SIZE = 268435456

KA = dict(u=0, logA=8, Aim=16, Cre=24, Cim=32, logdt=40, Dsk=48, Bx=56, w1=64, b1=72, w2=80, b2=88, out=96, dbg=104, ws=112)
SZ = dict(u=2048*576*2, logA=576*128*2, Aim=576*128*2, Cre=576*128*2, Cim=576*128*2, logdt=576*2, Dsk=576*2,
          w1=2048*4608*2, b1=4608*2, w2=4608*2048*2, b2=2048*2, out=2048*576*2, ws=WS_SIZE, dbg=256)

LOG2E = 0x3fb8aa3b
INV2PI = 0x3e22f983


def f32hex(x):
    import struct
    return "0x%08x" % struct.unpack("<I", struct.pack("<f", x))[0]


def load_ptr(a, name, sreg):
    a(f"s_load_dwordx2 s[{sreg}:{sreg+1}], s[0:1], {KA[name]}")


def bf16r(a, dst, src, tmp=None):
    a(f"v_cvt_pk_bf16_f32 v{dst}, v{src}, v{src}")
    a(f"v_lshlrev_b32 v{dst}, 16, v{dst}")


def dpp_reduce32(a, v, op="v_add_f32"):
    for sh in (1, 2, 4, 8):
        a("s_nop 1")
        a(f"{op} v{v}, v{v}, v{v} row_shr:{sh} bound_ctrl:0")
    a("s_nop 1")
    a(f"{op} v{v}, v{v}, v{v} row_bcast:15 row_mask:0xa")


def ln_stats(a, XB, vS, vQ, vT):
    a(f"v_mov_b32 v{vS}, 0\nv_mov_b32 v{vQ}, 0")
    a(f"v_mov_b32 v{vT}, 0x3f803f80")
    for i in range(9):
        a(f"v_dot2_f32_bf16 v{vS}, v{XB+i}, v{vT}, v{vS}")
        a(f"v_dot2_f32_bf16 v{vQ}, v{XB+i}, v{XB+i}, v{vQ}")
    a("s_nop 3")
    dpp_reduce32(a, vS)
    dpp_reduce32(a, vQ)
    inv = f32hex(1.0 / 576)
    a(f"v_mul_f32 v{vS}, {inv}, v{vS}")
    a(f"v_mul_f32 v{vQ}, {inv}, v{vQ}")
    a(f"v_fma_f32 v{vQ}, -v{vS}, v{vS}, v{vQ}")
    a(f"v_max_f32 v{vQ}, 0, v{vQ}")
    bf16r(a, vS, vS)
    bf16r(a, vQ, vQ)
    a(f"v_add_f32 v{vQ}, {f32hex(1e-5)}, v{vQ}")
    bf16r(a, vQ, vQ)
    a(f"v_sqrt_f32 v{vQ}, v{vQ}")
    a("s_nop 0")
    bf16r(a, vQ, vQ)
    a(f"v_rcp_f32 v{vQ}, v{vQ}")
    a("s_nop 0")


def gen_k1(a):
    name = "prep_kernel"
    kernel_header(a, name)
    a("s_cmp_ge_u32 s2, 256\ns_cbranch_scc1 L_k1_end")
    load_ptr(a, "u", 4)
    load_ptr(a, "ws", 6)
    load_ptr(a, "logA", 8)
    load_ptr(a, "Aim", 10)
    load_ptr(a, "Cre", 12)
    load_ptr(a, "Cim", 14)
    load_ptr(a, "logdt", 16)
    a("v_lshrrev_b32 v1, 6, v0\nv_and_b32 v2, 63, v0\ns_nop 0\nv_readfirstlane_b32 s3, v1")
    a("s_waitcnt lgkmcnt(0)")
    srd(a, 20, 4, SZ["u"])
    srd(a, 24, 6, WS_SIZE)
    srd(a, 28, 8, SZ["logA"])
    srd(a, 32, 10, SZ["Aim"])
    srd(a, 36, 12, SZ["Cre"])
    srd(a, 40, 14, SZ["Cim"])
    srd(a, 44, 16, SZ["logdt"])
    a("""
    s_lshl_b32 s4, s2, 3
    s_lshl_b32 s5, s3, 1
    s_add_u32 s4, s4, s5
    v_lshrrev_b32 v3, 5, v2
    v_add_u32 v3, s4, v3
    v_and_b32 v4, 31, v2
    v_mul_u32_u24 v5, 1152, v3
    v_mul_u32_u24 v4, 36, v4
    v_add_u32 v5, v5, v4
    buffer_load_dwordx4 v[8:11], v5, s[20:23], 0 offen
    buffer_load_dwordx4 v[12:15], v5, s[20:23], 0 offen offset:16
    buffer_load_dword v16, v5, s[20:23], 0 offen offset:32
    """)
    a("s_cmp_ge_u32 s2, 192\ns_cbranch_scc1 L_k1_stats")
    a("""
    s_mul_i32 s5, s2, 768
    v_and_b32 v6, 127, v0
    v_lshlrev_b32 v6, 1, v6
    v_add_u32 v6, s5, v6
    s_mul_i32 s6, s2, 6
    v_mov_b32 v7, s6
    """)
    for c in range(3):
        a(f"buffer_load_ushort v{40+c*4+0}, v6, s[28:31], 0 offen offset:{c*256}")
        a(f"buffer_load_ushort v{40+c*4+1}, v6, s[32:35], 0 offen offset:{c*256}")
        a(f"buffer_load_ushort v{40+c*4+2}, v6, s[36:39], 0 offen offset:{c*256}")
        a(f"buffer_load_ushort v{40+c*4+3}, v6, s[40:43], 0 offen offset:{c*256}")
        a(f"buffer_load_ushort v{52+c}, v7, s[44:47], 0 offen offset:{c*2}")
    a.label("L_k1_stats")
    a("s_cmp_ge_u32 s2, 192\ns_cbranch_scc1 L_k1_stats_w0")
    a("s_waitcnt vmcnt(15)\ns_branch L_k1_stats_go")
    a.label("L_k1_stats_w0")
    a("s_waitcnt vmcnt(0)")
    a.label("L_k1_stats_go")
    ln_stats(a, 8, 17, 18, 19)
    a(f"""
    v_mov_b32 v20, v17
    v_mov_b32 v21, v18
    v_lshlrev_b32 v22, 3, v3
    v_and_b32 v4, 31, v2
    v_cmp_eq_u32 vcc, 31, v4
    s_and_saveexec_b64 s[48:49], vcc
    buffer_store_dwordx2 v[20:21], v22, s[24:27], 0 offen offset:{WS_STATS1}
    s_mov_b64 exec, s[48:49]
    """)
    a("s_cmp_ge_u32 s2, 192\ns_cbranch_scc1 L_k1_end")

    PAR = 0
    MAXS = 6144
    KP = 8192
    KPP = 2056 * 4
    R0 = KP + 3 * KPP
    a("v_lshlrev_b32 v6, 4, v0\nv_mov_b32 v60, 0\nv_mov_b32 v61, 0\nv_mov_b32 v62, 0\nv_mov_b32 v63, 0")
    for k in range(7):
        a(f"ds_write_b128 v6, v[60:63] offset:{KP + k*4096}")
    a("s_waitcnt vmcnt(1)")
    a("s_cmp_ge_u32 s3, 2\ns_cbranch_scc1 L_k1_par_done")
    for c in range(3):
        lA, Ai, Cr, Ci, ld = 40+c*4, 40+c*4+1, 40+c*4+2, 40+c*4+3, 52+c
        for r in (lA, Ai, Cr, Ci, ld):
            a(f"v_lshlrev_b32 v{r}, 16, v{r}")
        a(f"v_mul_f32 v{ld}, {LOG2E}, v{ld}\nv_exp_f32 v{ld}, v{ld}\ns_nop 0")
        bf16r(a, ld, ld)
        a(f"v_mul_f32 v{lA}, {LOG2E}, v{lA}\nv_exp_f32 v{lA}, v{lA}\ns_nop 0")
        bf16r(a, lA, lA)
        a(f"v_mul_f32 v{lA}, v{lA}, v{ld}")
        a(f"v_mul_f32 v{lA}, {f32hex(-1.4426950408889634)}, v{lA}")
        a(f"v_mul_f32 v{Ai}, v{Ai}, v{ld}")
        a(f"v_mul_f32 v{Ai}, {INV2PI}, v{Ai}")
        a(f"v_mul_f32 v{Cr}, v{Cr}, v{ld}")
        a(f"v_mul_f32 v{Ci}, v{Ci}, v{ld}")
        a(f"v_max_f32 v{56+c}, abs(v{Cr}), abs(v{Ci})")
        for sh in (1, 2, 4, 8):
            a("s_nop 1")
            a(f"v_max_f32 v{56+c}, v{56+c}, v{56+c} row_shr:{sh} bound_ctrl:0")
        a("s_nop 1")
        a(f"v_max_f32 v{56+c}, v{56+c}, v{56+c} row_bcast:15 row_mask:0xa")
        a("s_nop 1")
        a(f"v_max_f32 v{56+c}, v{56+c}, v{56+c} row_bcast:31 row_mask:0xc")
    a(f"""
    s_lshl_b32 s5, s3, 2
    v_mov_b32 v59, s5
    v_cmp_eq_u32 vcc, 63, v2
    s_and_saveexec_b64 s[48:49], vcc
    ds_write_b32 v59, v56 offset:{MAXS}
    ds_write_b32 v59, v57 offset:{MAXS+8}
    ds_write_b32 v59, v58 offset:{MAXS+16}
    s_mov_b64 exec, s[48:49]
    """)
    a.label("L_k1_par_done")
    a("s_waitcnt lgkmcnt(0)\ns_barrier")
    a("s_cmp_ge_u32 s3, 2\ns_cbranch_scc1 L_k1_par_done2")
    a("v_mov_b32 v59, 0")
    for c in range(3):
        a(f"ds_read_b64 v[{64+2*c}:{65+2*c}], v59 offset:{MAXS+8*c}")
    a("s_waitcnt lgkmcnt(0)")
    a("v_and_b32 v6, 127, v0\nv_lshlrev_b32 v6, 4, v6")
    for c in range(3):
        lA, Ai, Cr, Ci = 40+c*4, 40+c*4+1, 40+c*4+2, 40+c*4+3
        a(f"v_max_f32 v{64+2*c}, v{64+2*c}, v{65+2*c}")
        a(f"v_frexp_exp_i32_f32 v{64+2*c}, v{64+2*c}")
        a(f"v_sub_u32 v{65+2*c}, 1, v{64+2*c}")
        a(f"v_ldexp_f32 v{Cr}, v{Cr}, v{65+2*c}")
        a(f"v_ldexp_f32 v{Ci}, v{Ci}, v{65+2*c}")
        a(f"ds_write_b128 v6, v[{lA}:{lA+3}] offset:{PAR + c*2048}")
    a(f"""
    v_mov_b32 v70, 1.0
    v_ldexp_f32 v72, v70, v64
    v_ldexp_f32 v73, v70, v66
    v_ldexp_f32 v74, v70, v68
    s_mul_i32 s5, s2, 12
    s_add_u32 s5, s5, {WS_KSC}
    v_mov_b32 v70, 0
    v_cmp_eq_u32 vcc, 0, v0
    s_and_saveexec_b64 s[48:49], vcc
    buffer_store_dwordx3 v[72:74], v70, s[24:27], s5 offen
    s_mov_b64 exec, s[48:49]
    """)
    a.label("L_k1_par_done2")
    a("s_waitcnt lgkmcnt(0)\ns_barrier")

    vP = [80, 81, 82]
    vPC = 83
    a(f"""
    v_and_b32 v6, 15, v2
    v_lshrrev_b32 v7, 3, v6
    v_lshlrev_b32 v7, 7, v7
    v_and_b32 v8, 7, v6
    v_add_u32 v{vP[0]}, v7, v8
    v_lshrrev_b32 v7, 2, v6
    v_lshlrev_b32 v7, 7, v7
    v_and_b32 v8, 3, v6
    v_lshlrev_b32 v8, 1, v8
    v_add_u32 v7, v7, v8
    v_add_u32 v7, 256, v7
    v_subrev_u32 v8, 8, v6
    v_lshrrev_b32 v8, 1, v8
    v_lshlrev_b32 v8, 7, v8
    v_and_b32 v9, 1, v6
    v_lshlrev_b32 v9, 2, v9
    v_add_u32 v8, v8, v9
    v_add_u32 v8, 512, v8
    v_cmp_gt_u32 vcc, 8, v6
    s_nop 1
    v_cndmask_b32 v{vP[1]}, v8, v7, vcc
    v_min_u32 v7, 8, v6
    v_lshlrev_b32 v7, 7, v7
    v_add_u32 v{vP[2]}, 1024, v7
    v_lshlrev_b32 v{vPC}, 3, v6
    """)
    PT = 6400
    a(f"""
    v_lshlrev_b32 v7, 2, v6
    ds_write_b32 v7, v{vP[0]} offset:{PT}
    ds_write_b32 v7, v{vP[1]} offset:{PT+64}
    ds_write_b32 v7, v{vP[2]} offset:{PT+128}
    """)
    for r in vP + [vPC]:
        a(f"v_cvt_f32_u32 v{r}, v{r}")
    a("s_waitcnt lgkmcnt(0)\ns_barrier")
    a(f"""
    v_lshrrev_b32 v7, 4, v2
    v_lshlrev_b32 v8, 4, v7
    ds_read_b128 v[84:87], v8 offset:{PT}
    ds_read_b128 v[88:91], v8 offset:{PT+64}
    ds_read_b128 v[92:95], v8 offset:{PT+128}
    v_lshlrev_b32 v9, 5, v6
    s_waitcnt lgkmcnt(0)
    """)
    for r in range(84, 96):
        a(f"v_lshlrev_b32 v{r}, 2, v{r}\nv_add_u32 v{r}, v{r}, v9")
    a(f"""
    v_mov_b32 v10, {2052*4}
    v_cmp_lt_u32 vcc, {2048*4}, v92
    s_nop 1
    v_cndmask_b32 v92, v92, v10, vcc
    """)
    a(f"""
    v_cmp_lt_u32 vcc, 1, v7
    s_nop 1
    v_cndmask_b32 v93, v93, v10, vcc
    v_cndmask_b32 v94, v94, v10, vcc
    v_cndmask_b32 v95, v95, v10, vcc
    v_cmp_eq_u32 vcc, 3, v7
    s_nop 1
    v_cndmask_b32 v92, v92, v10, vcc
    """)
    a(f"""
    s_lshl_b32 s5, s3, 9
    v_lshlrev_b32 v8, 7, v7
    v_add_u32 v96, s5, v8
    """)
    PB = 100
    AR = 132
    AI = 144
    BR = 156
    BI = 160
    DD = 164
    T = 176
    for c in range(3):
        for i in range(8):
            a(f"ds_read_b128 v[{PB+4*i}:{PB+4*i+3}], v96 offset:{PAR + c*2048 + i*16}")
        for r in range(12):
            a(f"v_mov_b32 v{DD+r}, 0")
        a("s_waitcnt lgkmcnt(0)")

        def cexp(pos, i, outs):
            p = PB + 4 * i
            t0, t1, t2, t3 = T, T+1, T+2, T+3
            return [
                f"v_mul_f32 v{t0}, v{p}, v{pos}",
                f"v_mul_f32 v{t1}, v{p+1}, v{pos}",
                f"v_exp_f32 v{t0}, v{t0}",
                f"v_fract_f32 v{t1}, v{t1}",
                f"v_sin_f32 v{t2}, v{t1}",
                f"v_cos_f32 v{t3}, v{t1}",
                "s_nop 0",
                f"v_mul_f32 v{outs[0]}, v{t0}, v{t3}",
                f"v_mul_f32 v{outs[1]}, v{t0}, v{t2}",
            ]
        for t in range(3):
            for i2 in range(4):
                for s in cexp(vP[t], 2*i2, (T+8, T+9)):
                    a(s)
                for s in cexp(vP[t], 2*i2+1, (T+10, T+11)):
                    a(s)
                a(f"v_cvt_pk_f16_f32 v{AR+4*t+i2}, v{T+8}, v{T+10}")
                a(f"v_cvt_pk_f16_f32 v{AI+4*t+i2}, v{T+9}, v{T+11}")
        for i2 in range(4):
            for h, (o0, o1) in enumerate(((T+8, T+9), (T+10, T+11))):
                i = 2*i2 + h
                p = PB + 4*i
                for s in cexp(vPC, i, (T+4, T+5)):
                    a(s)
                a(f"v_mul_f32 v{o0}, v{p+2}, v{T+4}")
                a(f"v_fma_f32 v{o0}, -v{p+3}, v{T+5}, v{o0}")
                a(f"v_mul_f32 v{o1}, -v{p+2}, v{T+5}")
                a(f"v_fma_f32 v{o1}, -v{p+3}, v{T+4}, v{o1}")
            a(f"v_cvt_pk_f16_f32 v{BR+i2}, v{T+8}, v{T+10}")
            a(f"v_cvt_pk_f16_f32 v{BI+i2}, v{T+9}, v{T+11}")
        a("s_nop 1")
        for t in range(3):
            a(f"v_mfma_f32_16x16x32_f16 v[{DD+4*t}:{DD+4*t+3}], v[{AR+4*t}:{AR+4*t+3}], v[{BR}:{BR+3}], v[{DD+4*t}:{DD+4*t+3}]")
        for t in range(3):
            a(f"v_mfma_f32_16x16x32_f16 v[{DD+4*t}:{DD+4*t+3}], v[{AI+4*t}:{AI+4*t+3}], v[{BI}:{BI+3}], v[{DD+4*t}:{DD+4*t+3}]")
        a("s_nop 7\ns_nop 1")
        for r in range(12):
            a(f"ds_add_f32 v{84+r}, v{DD+r} offset:{KP + c*KPP}")
    a("s_waitcnt lgkmcnt(0)\ns_barrier")
    for rnd in range(2):
        if rnd == 1:
            a("v_cmp_gt_u32 vcc, 4, v0\ns_and_saveexec_b64 s[48:49], vcc\ns_cbranch_execz L_k1_exp_done")
        base = 2048 - rnd * 2048
        a(f"v_lshlrev_b32 v6, 3, v0")
        for i in range(8):
            a(f"v_sub_u32 v{100+i}, {base - i}, v6")
            a(f"v_cvt_f32_i32 v{110+i}, v{100+i}")
            a(f"v_cvt_pk_bf16_f32 v{110+i}, v{110+i}, v{110+i}")
            a(f"v_lshlrev_b32 v{110+i}, 16, v{110+i}")
            a(f"v_cvt_i32_f32 v{110+i}, v{110+i}")
            a(f"v_mov_b32 v120, 2049")
            a(f"v_cmp_gt_u32 vcc, 2048, v{100+i}")
            a("s_nop 1")
            a(f"v_cndmask_b32 v{110+i}, v120, v{110+i}, vcc")
            a(f"v_lshlrev_b32 v{110+i}, 2, v{110+i}")
        a(f"v_lshlrev_b32 v7, 4, v0")
        a(f"s_mul_i32 s5, s2, {3*KR_PITCH}")
        a(f"s_add_u32 s5, s5, {WS_KR + rnd*4096}")
        for c in range(3):
            for i in range(8):
                a(f"ds_read_b32 v{124+i}, v{110+i} offset:{KP + c*KPP}")
            a("s_waitcnt lgkmcnt(0)")
            for i2 in range(4):
                a(f"v_cvt_pk_f16_f32 v{136+i2}, v{124+2*i2}, v{125+2*i2}")
            a(f"buffer_store_dwordx4 v[136:139], v7, s[24:27], s5 offen offset:{0}")
            a("s_nop 1")
            a(f"s_add_u32 s5, s5, {KR_PITCH}")
    a.label("L_k1_exp_done")
    a.label("L_k1_end")
    a("s_endpgm")
    return name, 256 * 1, 60000, 192


def build(kernels, path):
    a = Asm()
    body = Asm()
    infos = []
    for k in kernels:
        infos.append(k(body))
    hdr = open("cdna_kernels/" + KN + ".s.ref").read().split("; Override")[0]
    out = hdr
    for (name, grid, lds, vg) in infos:
        nthreads = 256
        out += f"; @launch kernel={name} grid=({grid // 1},1,1) block=({nthreads},1,1) lds={lds}\n"
    out += '.amdgcn_target "amdgcn-amd-amdhsa--gfx950"\n.text\n'
    out += body.text()
    out += '.section .rodata,"a"\n'
    done = set()
    for (name, grid, lds, vg) in infos:
        if name not in done:
            if isinstance(vg, tuple):
                out += kernel_desc(name, vg[0] + vg[1], accum=vg[0])
            else:
                out += kernel_desc(name, vg)
            done.add(name)
    open(path, "w").write(out)


if __name__ == "__main__":
    from gen2 import *
    build(ALL_KERNELS, sys.argv[1])
```
